```python
import torch

def _softmax(x, axis=-1):
    return torch.softmax(x, dim=axis)
def _gelu(x):
    return torch.nn.functional.gelu(x, approximate="tanh")
def _silu(x):
    return torch.nn.functional.silu(x)
def _sigmoid(x):
    return torch.sigmoid(x)
def _layernorm(x, axis=-1, eps=1e-5):
    m = x.mean(dim=axis, keepdim=True)
    v = x.var(dim=axis, keepdim=True, unbiased=False)
    return (x - m) / torch.sqrt(v + eps)
def _scatter_add(tgt, idx, src, axis=0):
    return tgt.clone().index_add_(axis, idx, src)
def _segment_sum(src, seg, n):
    out = torch.zeros((n,) + src.shape[1:], dtype=src.dtype)
    return out.index_add_(0, seg, src)
def _pad(x, pw):
    flat = tuple(v for pair in reversed(pw) for v in pair)
    return torch.nn.functional.pad(x, flat)

kernel_name = 'standalone__gqa_block_cached__sampling'

def setup_inputs():

    _w = (lambda a: (lambda t: t.to(torch.bfloat16) if t.is_floating_point() else t)(torch.as_tensor(a)))
    B, Sq, D = 32, 32, 1024
    Hq, Hkv, Sk, Dh = 32, 4, 2048, 128
    assert Hq % Hkv == 0, (Hq, Hkv)
    return {
        "x": _w((lambda *s: torch.randn(*s, dtype=torch.bfloat16) * 0.8)(B, Sq, D)),
        "k_cache": _w((lambda *s: torch.randn(*s, dtype=torch.bfloat16) * 0.8)(B, Hkv, Sk, Dh)),
        "v_cache": _w((lambda *s: torch.randn(*s, dtype=torch.bfloat16) * 0.05)(B, Hkv, Sk, Dh)),
        "wq": _w((lambda *s: torch.randn(*s, dtype=torch.bfloat16) * 0.8)(D, Hq * Dh) * (D ** -0.5)),
        "wo": _w((lambda *s: torch.randn(*s, dtype=torch.bfloat16) * 0.05)(Hq * Dh, D) * ((Hq * Dh) ** -0.5)),
    }

def reference(x, k_cache, v_cache, wq, wo):
    B, Sq, D = x.shape
    Hq, Dh = 32, 128
    Hkv = k_cache.shape[1]
    rep = Hq // Hkv
    q = (lambda x, *d: x.permute(*d))((x @ wq).reshape(B, Sq, Hq, Dh), 0, 2, 1, 3)
    k = (lambda x, n, axis: torch.repeat_interleave(x, n, dim=axis))(k_cache, rep, axis=1)
    v = (lambda x, n, axis: torch.repeat_interleave(x, n, dim=axis))(v_cache, rep, axis=1)
    scores = torch.einsum("bhqd,bhkd->bhqk", q, k) * (Dh ** -0.5)
    p = _softmax(scores, axis=-1)
    o = torch.einsum("bhqk,bhkd->bhqd", p, v)
    return (lambda x, *d: x.permute(*d))(o, 0, 2, 1, 3).reshape(B, Sq, Hq * Dh) @ wo
```

```python
import struct

def f32bits(x):
    return struct.unpack("<I", struct.pack("<f", x))[0]

class Emit:
    def __init__(self):
        self.lines = []
        self.vm = []
    def __call__(self, s):
        self.lines.append("    " + s)
    def label(self, s):
        self.lines.append(s + ":")
    def comment(self, s):
        self.lines.append("    ; " + s)
    def raw(self, s):
        self.lines.append(s)
    def vmem(self, s, tag):
        self(s); self.vm.append(tag)
    def wait_vm(self, pred, extra=""):
        last = -1
        for i, t in enumerate(self.vm):
            if pred(t): last = i
        n = len(self.vm) - 1 - last
        assert n <= 63
        if last >= 0:
            self(f"s_waitcnt vmcnt({n}){extra}")
            self.vm = self.vm[last+1:]
        elif extra:
            self(f"s_waitcnt{extra}")
        return n
    def text(self):
        return "\n".join(self.lines) + "\n"

def srd(e, d, lo, hi, nbytes, add_lo=None):
    if add_lo is None:
        e(f"s_mov_b32 s{d}, s{lo}")
        e(f"s_and_b32 s{d+1}, s{hi}, 0xffff")
    else:
        e(f"s_add_u32 s{d}, s{lo}, {add_lo}")
        e(f"s_addc_u32 s{d+1}, s{hi}, 0")
        e(f"s_and_b32 s{d+1}, s{d+1}, 0xffff")
    e(f"s_mov_b32 s{d+2}, {nbytes}")
    e(f"s_mov_b32 s{d+3}, 0x00020000")

def kd(name, nv, ns=102, accum=None):
    if accum is None: accum = (nv + 3)//4*4
    return f"""
.amdhsa_kernel {name}
  .amdhsa_next_free_vgpr {nv}
  .amdhsa_next_free_sgpr {ns}
  .amdhsa_accum_offset {accum}
  .amdhsa_group_segment_fixed_size 0
  .amdhsa_kernarg_size 64
  .amdhsa_user_sgpr_count 2
  .amdhsa_user_sgpr_kernarg_segment_ptr 1
  .amdhsa_system_sgpr_workgroup_id_x 1
.end_amdhsa_kernel
"""
```

```python
from asmlib import *
import math

NBLK = 64
R = 8
QF, OA, SA, PT, PP, KF, VF = 8, 40, 104, 120, 136, 144, 176
KA_LO, KA_HI, VA_LO, VA_HI = 208, 216, 224, 228
DK, DV = 232, 233
VM, VMC, VL, VBS = 234, 235, 236, 237
T0 = 238
sK, sV, sQ, sO = 8, 12, 16, 20
S_C, S_THR, S_KOFF, S_VOFF, S_CNT, S_WV, S_QOFF = 24, 25, 26, 27, 28, 29, 32
WS_Q_OFF, WS_O_OFF = 0, 8 << 20

def gen_attn(name):
    e = Emit()
    slow_paths = []
    e.raw(f".globl {name}\n.p2align 8\n.type {name},@function\n{name}:")
    e("s_cmp_ge_u32 s2, 256")
    e(f"s_cbranch_scc1 L_{name}_end")
    e("s_load_dwordx2 s[4:5], s[0:1], 8")
    e("s_load_dwordx2 s[6:7], s[0:1], 16")
    e("s_load_dwordx2 s[30:31], s[0:1], 56")
    e("v_and_b32 v1, 63, v0")
    e("v_lshrrev_b32 v2, 6, v0")
    e("s_nop 0")
    e(f"v_readfirstlane_b32 s{S_WV}, v2")
    e("s_and_b32 s33, s2, 127")
    e("s_lshr_b32 s34, s2, 7")
    e("s_lshl_b32 s35, s33, 19")
    e("s_lshr_b32 s36, s33, 13")
    e("s_waitcnt lgkmcnt(0)")
    e("s_add_u32 s8, s4, s35"); e("s_addc_u32 s9, s5, s36"); e("s_and_b32 s9, s9, 0xffff")
    e("s_mov_b32 s10, 0x80000"); e("s_mov_b32 s11, 0x00020000")
    e("s_add_u32 s12, s6, s35"); e("s_addc_u32 s13, s7, s36"); e("s_and_b32 s13, s13, 0xffff")
    e("s_mov_b32 s14, 0x80000"); e("s_mov_b32 s15, 0x00020000")
    srd(e, sQ, 30, 31, 8 << 20, WS_Q_OFF if WS_Q_OFF else None)
    srd(e, sO, 30, 31, 8 << 20, WS_O_OFF)
    e(f"s_mov_b32 s{S_C}, 0x{f32bits(math.log2(math.e)/math.sqrt(128.0)):08x}")
    e(f"s_mov_b32 s{S_THR}, 0x{f32bits(256.0):08x}")
    e("s_and_b32 s37, s33, 3"); e("s_lshl_b32 s37, s37, 3"); e("s_lshl_b32 s38, s34, 2"); e("s_add_u32 s37, s37, s38")
    e(f"s_and_b32 s38, s{S_WV}, 3"); e("s_add_u32 s37, s37, s38")
    e("s_lshl_b32 s37, s37, 8")
    e("s_lshr_b32 s38, s33, 2"); e("s_lshl_b32 s38, s38, 18")
    e(f"s_add_u32 s{S_QOFF}, s37, s38")
    e("v_and_b32 v2, 31, v1"); e("v_lshlrev_b32 v2, 13, v2")
    e("v_lshrrev_b32 v3, 5, v1"); e("v_lshlrev_b32 v3, 4, v3"); e("v_add_u32 v2, v2, v3")
    e(f"v_mov_b32 v{T0+8}, v2")
    for s8 in range(8):
        e.vmem(f"buffer_load_dwordx4 v[{QF+4*s8}:{QF+4*s8+3}], v2, s[{sQ}:{sQ+3}], s{S_QOFF} offen offset:{32*s8}", ('q', -99))
    e("v_lshrrev_b32 v2, 4, v1")
    e(f"s_lshl_b32 s37, s{S_WV}, 2")
    e("v_add_u32 v3, s37, v2"); e("v_and_b32 v3, 15, v3")
    e("v_and_b32 v4, 15, v1"); e("v_xor_b32 v3, v3, v4"); e("v_lshlrev_b32 v3, 4, v3")
    e("v_lshlrev_b32 v5, 8, v2"); e(f"v_add_u32 v{DK}, v5, v3")
    e("v_lshlrev_b32 v3, 2, v2"); e("v_xor_b32 v3, v3, v4"); e("v_lshlrev_b32 v3, 4, v3")
    e(f"v_add_u32 v{DV}, v5, v3")
    e(f"s_lshl_b32 s{S_KOFF}, s{S_WV}, 10")
    e("v_and_b32 v2, 31, v1"); e("v_lshrrev_b32 v3, 5, v1")
    e("v_and_b32 v4, 15, v2"); e("v_xor_b32 v4, v4, v3"); e("v_lshlrev_b32 v4, 4, v4")
    e("v_lshlrev_b32 v5, 8, v2"); e(f"v_add_u32 v{KA_LO}, v5, v4")
    for s8 in range(1, 8):
        e(f"v_xor_b32 v{KA_LO+s8}, {32*s8}, v{KA_LO}")
    e("v_and_b32 v2, 15, v1"); e("v_lshrrev_b32 v3, 2, v2")
    e("v_lshrrev_b32 v4, 5, v1"); e("v_lshlrev_b32 v4, 2, v4"); e("v_add_u32 v4, v4, v3"); e("v_lshlrev_b32 v4, 8, v4")
    e("v_lshlrev_b32 v5, 6, v3"); e("v_add_u32 v4, v4, v5")
    e("v_lshrrev_b32 v5, 4, v1"); e("v_and_b32 v5, 1, v5"); e("v_lshlrev_b32 v5, 5, v5"); e("v_add_u32 v4, v4, v5")
    e("v_and_b32 v5, 3, v1"); e("v_lshlrev_b32 v5, 3, v5"); e(f"v_add_u32 v{VA_LO}, v4, v5")
    for db in range(1, 4):
        e(f"v_xor_b32 v{VA_LO+db}, {64*db}, v{VA_LO}")
    for i in range(8):
        e(f"v_add_u32 v{KA_HI+i}, 0x10000, v{KA_LO+i}")
    for i in range(4):
        e(f"v_add_u32 v{VA_HI+i}, 0x10000, v{VA_LO+i}")
    e(f"v_mov_b32 v{VM}, 0x{f32bits(-1.0e30):08x}")
    e(f"v_mul_f32 v{VMC}, s{S_C}, v{VM}")
    e(f"v_mov_b32 v{VL}, 0")
    for r in range(OA, OA+64):
        e(f"v_mov_b32 v{r}, 0")
    for r in range(PP, PP+8):
        e(f"v_mov_b32 v{r}, 0")

    def dma_unit(t):
        slot = ((t+1) % R) * 16384
        if 0 <= t+1 <= NBLK-1:
            e(f"s_lshl_b32 s37, s{S_WV}, 10"); e(f"s_add_u32 s37, s37, {slot}")
            e("s_mov_b32 m0, s37")
            e("s_nop 0")
            e.vmem(f"buffer_load_dwordx4 v{DK}, s[{sK}:{sK+3}], s{S_KOFF} offen lds", ('u', t))
        if 0 <= t-1 <= NBLK-1:
            e(f"s_lshl_b32 s37, s{S_WV}, 10"); e(f"s_add_u32 s37, s37, {slot + 8192}")
            e("s_mov_b32 m0, s37")
            e(f"s_sub_u32 s{S_VOFF}, s{S_KOFF}, 16384")
            e.vmem(f"buffer_load_dwordx4 v{DV}, s[{sV}:{sV+3}], s{S_VOFF} offen lds", ('u', t))
        e(f"s_add_u32 s{S_KOFF}, s{S_KOFF}, 8192")

    def slot_head(t):
        e.wait_vm(lambda g: g[1] <= t)
        e("s_barrier")
        dma_unit(t + R - 1)

    def mfma_burst(t):
        e("s_waitcnt lgkmcnt(0)")
        if t >= 2:
            for ks in range(2):
                for db in range(4):
                    o = OA + 16*db; f = VF + 4*(2*db + ks); p = PP + 4*ks
                    e(f"v_mfma_f32_32x32x16_bf16 v[{o}:{o+15}], v[{f}:{f+3}], v[{p}:{p+3}], v[{o}:{o+15}]")
        if t <= NBLK-1:
            for s8 in range(8):
                c = "0" if s8 == 0 else f"v[{SA}:{SA+15}]"
                e(f"v_mfma_f32_32x32x16_bf16 v[{SA}:{SA+15}], v[{KF+4*s8}:{KF+4*s8+3}], v[{QF+4*s8}:{QF+4*s8+3}], {c}")

    def softmax_core():
        for r in range(16):
            e(f"v_fma_f32 v{PT+r}, v{SA+r}, s{S_C}, -v{VMC}")
        for r in range(16):
            e(f"v_exp_f32 v{PT+r}, v{PT+r}")
        for i in range(8):
            e(f"v_add_f32 v{T0+i}, v{PT+2*i}, v{PT+2*i+1}")
        for i in range(4):
            e(f"v_add_f32 v{T0+i}, v{T0+2*i}, v{T0+2*i+1}")
        e(f"v_add_f32 v{T0}, v{T0}, v{T0+1}"); e(f"v_add_f32 v{T0+2}, v{T0+2}, v{T0+3}")
        e(f"v_add_f32 v{VBS}, v{T0}, v{T0+2}")

    uid = [0]
    def valu_burst(t):
        slot = ((t+1) % R) * 16384
        hi = slot >= 65536
        base = slot - 65536 if hi else slot
        ka = KA_HI if hi else KA_LO
        va = VA_HI if hi else VA_LO
        if 0 <= t-1 <= NBLK-1:
            for db in range(4):
                for ks in range(2):
                    for jj in range(2):
                        f = VF + 4*(2*db + ks) + 2*jj
                        e(f"ds_read_b64_tr_b16 v[{f}:{f+1}], v{va+db} offset:{base + 8192 + 4096*ks + 2048*jj}")
        if 0 <= t+1 <= NBLK-1:
            for s8 in range(8):
                e(f"ds_read_b128 v[{KF+4*s8}:{KF+4*s8+3}], v{ka+s8} offset:{base}")
        if 0 <= t-1 <= NBLK-1:
            if not (0 <= t+1 <= NBLK-1):
                e("s_nop 7")
            uid[0] += 1
            u = uid[0]
            softmax_core()
            e(f"v_cmp_lt_f32 vcc, s{S_THR}, v{VBS}")
            e(f"s_cbranch_vccnz L_{name}_slow{u}")
            e.label(f"L_{name}_res{u}")
            e(f"v_add_f32 v{VL}, v{VL}, v{VBS}")
            for j in range(8):
                e(f"v_cvt_pk_bf16_f32 v{PP+j}, v{PT+2*j}, v{PT+2*j+1}")
            slow_paths.append(u)

    def prog(par):
        e.vm = list(vm_after_prologue)
        tag = f"p{par}"
        def slot(t):
            slot_head(t)
            if (t % 2) == par: mfma_burst(t)
            else: valu_burst(t)
        for t in range(-1, 2):
            slot(t)
        n_it = 6
        e(f"s_mov_b32 s{S_CNT}, {n_it}")
        e.label(f"L_{name}_loop{tag}")
        q0 = list(e.vm)
        for t in range(2, 2+R):
            slot(t)
        assert [(g[0], g[1]-R) for g in e.vm] == q0, (e.vm, q0)
        e(f"s_sub_u32 s{S_CNT}, s{S_CNT}, 1")
        e(f"s_cmp_lg_u32 s{S_CNT}, 0")
        e(f"s_cbranch_scc1 L_{name}_loop{tag}")
        e.vm = [(g[0], g[1] + (n_it-1)*R) for g in e.vm]
        for t in range(2 + n_it*R, NBLK + 2):
            slot(t)
        e(f"s_branch L_{name}_epi")

    for t in range(-1, R-2):
        dma_unit(t)
    vm_after_prologue = list(e.vm)
    e(f"s_cmp_ge_u32 s{S_WV}, 4")
    e(f"s_cbranch_scc1 L_{name}_par1")
    prog(0)
    e.label(f"L_{name}_par1")
    prog(1)

    for u in slow_paths:
        e.label(f"L_{name}_slow{u}")
        e(f"v_max3_f32 v{T0}, v{SA}, v{SA+1}, v{SA+2}")
        e(f"v_max3_f32 v{T0+1}, v{SA+3}, v{SA+4}, v{SA+5}")
        e(f"v_max3_f32 v{T0+2}, v{SA+6}, v{SA+7}, v{SA+8}")
        e(f"v_max3_f32 v{T0+3}, v{SA+9}, v{SA+10}, v{SA+11}")
        e(f"v_max3_f32 v{T0+4}, v{SA+12}, v{SA+13}, v{SA+14}")
        e(f"v_max3_f32 v{T0}, v{T0}, v{T0+1}, v{SA+15}")
        e(f"v_max3_f32 v{T0+2}, v{T0+2}, v{T0+3}, v{T0+4}")
        e(f"v_max_f32 v{T0}, v{T0}, v{T0+2}")
        e(f"v_mov_b32 v{T0+1}, v{T0}")
        e("s_nop 1")
        e(f"v_permlane32_swap_b32 v{T0}, v{T0+1}")
        e("s_nop 1")
        e(f"v_max3_f32 v{VM}, v{VM}, v{T0}, v{T0+1}")
        e(f"v_mul_f32 v{T0+2}, s{S_C}, v{VM}")
        e(f"v_sub_f32 v{T0+3}, v{VMC}, v{T0+2}")
        e(f"v_exp_f32 v{T0+3}, v{T0+3}")
        e(f"v_mov_b32 v{VMC}, v{T0+2}")
        for r in range(OA, OA+64):
            e(f"v_mul_f32 v{r}, v{r}, v{T0+3}")
        e(f"v_mul_f32 v{VL}, v{VL}, v{T0+3}")
        softmax_core()
        e(f"s_branch L_{name}_res{u}")

    e.label(f"L_{name}_epi")
    e("s_nop 15"); e("s_nop 3")
    e("s_barrier")
    e(f"v_mov_b32 v{T0}, v{VL}")
    e("s_nop 1")
    e(f"v_permlane32_swap_b32 v{VL}, v{T0}")
    e("s_nop 1")
    e(f"v_add_f32 v{VL}, v{VL}, v{T0}")
    e("v_lshlrev_b32 v2, 4, v1"); e(f"s_lshl_b32 s37, s{S_WV}, 13"); e("v_add_u32 v2, s37, v2")
    e("v_lshlrev_b32 v3, 2, v1"); e(f"s_lshl_b32 s39, s{S_WV}, 9"); e("s_add_u32 s39, s39, 65536"); e("v_add_u32 v3, s39, v3")
    e(f"ds_write_b32 v3, v{VM}"); e(f"ds_write_b32 v3, v{VL} offset:256")
    e(f"s_cmp_ge_u32 s{S_WV}, 4")
    e(f"s_cbranch_scc1 L_{name}_epi1")
    for q in range(8):
        e(f"ds_write_b128 v2, v[{OA+32+4*q}:{OA+32+4*q+3}] offset:{q*1024}")
    e(f"s_branch L_{name}_epi2")
    e.label(f"L_{name}_epi1")
    for q in range(8):
        e(f"ds_write_b128 v2, v[{OA+4*q}:{OA+4*q+3}] offset:{q*1024}")
    e.label(f"L_{name}_epi2")
    e("s_waitcnt lgkmcnt(0)")
    e("s_barrier")
    e(f"s_xor_b32 s37, s{S_WV}, 4")
    e("v_lshlrev_b32 v2, 4, v1"); e("s_lshl_b32 s38, s37, 13"); e("v_add_u32 v2, s38, v2")
    e("v_lshlrev_b32 v3, 2, v1"); e("s_lshl_b32 s39, s37, 9"); e("s_add_u32 s39, s39, 65536"); e("v_add_u32 v3, s39, v3")
    e(f"ds_read_b32 v{T0}, v3"); e(f"ds_read_b32 v{T0+1}, v3 offset:256")
    for q in range(8):
        e(f"ds_read_b128 v[{KF+4*q}:{KF+4*q+3}], v2 offset:{q*1024}")
    e("s_waitcnt lgkmcnt(0)")
    e(f"v_max_f32 v{T0+2}, v{VM}, v{T0}")
    e(f"v_sub_f32 v{T0+3}, v{VM}, v{T0+2}"); e(f"v_mul_f32 v{T0+3}, s{S_C}, v{T0+3}"); e(f"v_exp_f32 v{T0+3}, v{T0+3}")
    e(f"v_sub_f32 v{T0+4}, v{T0}, v{T0+2}"); e(f"v_mul_f32 v{T0+4}, s{S_C}, v{T0+4}"); e(f"v_exp_f32 v{T0+4}, v{T0+4}")
    e("s_nop 0")
    e(f"v_mul_f32 v{T0+5}, v{VL}, v{T0+3}")
    e(f"v_fma_f32 v{T0+5}, v{T0+1}, v{T0+4}, v{T0+5}")
    e(f"v_rcp_f32 v{T0+5}, v{T0+5}")
    e("s_nop 0")
    e(f"v_mul_f32 v{T0+3}, v{T0+3}, v{T0+5}")
    e(f"v_mul_f32 v{T0+4}, v{T0+4}, v{T0+5}")
    def finalize(own):
        for r in range(32):
            e(f"v_mul_f32 v{own+r}, v{own+r}, v{T0+3}")
        for r in range(32):
            e(f"v_fma_f32 v{own+r}, v{KF+r}, v{T0+4}, v{own+r}")
        for dbi in range(2):
            a = own + 16*dbi
            for t in range(2):
                for rq in (2*t, 2*t+1):
                    for i in range(2):
                        e(f"v_cvt_pk_bf16_f32 v{PT + 2*(rq-2*t) + i}, v{a+4*rq+2*i}, v{a+4*rq+2*i+1}")
                e("s_nop 1")
                e(f"v_permlane32_swap_b32 v{PT}, v{PT+2}")
                e(f"v_permlane32_swap_b32 v{PT+1}, v{PT+3}")
                e("s_nop 0")
                e(f"buffer_store_dwordx4 v[{PT}:{PT+3}], v{T0+8}, s[{sO}:{sO+3}], s40 offen offset:{64*dbi + 32*t}")
                e("s_nop 1")
    e(f"s_cmp_ge_u32 s{S_WV}, 4")
    e(f"s_cbranch_scc1 L_{name}_fin1")
    e(f"s_mov_b32 s40, s{S_QOFF}")
    finalize(OA)
    e(f"s_branch L_{name}_end")
    e.label(f"L_{name}_fin1")
    e(f"s_add_u32 s40, s{S_QOFF}, 128")
    finalize(OA+32)
    e.label(f"L_{name}_end")
    e("s_endpgm")
    return e.text(), kd(name, 256)
```

```python
from asmlib import *

def gen_gemm(name, mode, A_slot, A_off, lda, A_bytes, W_slot, ldw, W_bytes, C_slot, C_off, ldc, C_bytes, K):
    e = Emit()
    TM = 128 if mode == 'q' else 64
    R = 4 if mode == 'q' else 8
    XREG = TM * 128
    WSUB = 8192
    NSUB = TM // 64
    STAGE = XREG + NSUB * WSUB
    nst = K // 64
    ninst_x = XREG // 1024
    ninst_w = NSUB * 8
    per_x = ninst_x // 4
    per_w = ninst_w // 4
    sA, sW, sC = 12, 16, 20
    acc = lambda nb, tb: 64 + 32*nb + 16*tb
    fx = lambda b, tb: 20 + 16*b + 4*tb
    fw = lambda b, nb: 28 + 16*b + 4*nb
    ks_list = [0,1,2,3] if mode == 'q' else [0]

    e.raw(f".globl {name}\n.p2align 8\n.type {name},@function\n{name}:")
    e(f"s_cmp_ge_u32 s2, 256")
    e(f"s_cbranch_scc1 L_{name}_end")
    e(f"s_load_dwordx2 s[4:5], s[0:1], {A_slot}")
    e(f"s_load_dwordx2 s[6:7], s[0:1], {W_slot}")
    e(f"s_load_dwordx2 s[8:9], s[0:1], {C_slot}")
    e("v_and_b32 v1, 63, v0")
    e("v_lshrrev_b32 v2, 6, v0")
    e("s_nop 0")
    e("v_readfirstlane_b32 s24, v2")
    e("s_and_b32 s30, s2, 7")
    e("s_lshr_b32 s31, s2, 3")
    if mode == 'q':
        e("s_lshr_b32 s25, s30, 2"); e("s_lshl_b32 s25, s25, 2"); e("s_lshr_b32 s33, s31, 3"); e("s_add_u32 s25, s25, s33")
        e("s_and_b32 s26, s30, 3"); e("s_lshl_b32 s26, s26, 3"); e("s_and_b32 s33, s31, 7"); e("s_add_u32 s26, s26, s33")
        e("s_lshl_b32 s25, s25, 7"); e("s_lshl_b32 s26, s26, 7")
    else:
        e("s_lshr_b32 s25, s30, 1"); e("s_lshl_b32 s25, s25, 2"); e("s_lshr_b32 s33, s31, 3"); e("s_add_u32 s25, s25, s33")
        e("s_and_b32 s26, s30, 1"); e("s_lshl_b32 s26, s26, 3"); e("s_and_b32 s33, s31, 7"); e("s_add_u32 s26, s26, s33")
        e("s_lshl_b32 s25, s25, 6"); e("s_lshl_b32 s26, s26, 6")
    e("s_waitcnt lgkmcnt(0)")
    srd(e, sA, 4, 5, A_bytes, A_off if A_off else None)
    srd(e, sW, 6, 7, W_bytes)
    srd(e, sC, 8, 9, C_bytes, C_off if C_off else None)
    e("v_lshrrev_b32 v2, 3, v1")
    e("v_lshrrev_b32 v3, 4, v1")
    e("s_and_b32 s30, s24, 1"); e("s_lshl_b32 s30, s30, 2")
    e("v_add_u32 v3, s30, v3"); e("v_and_b32 v3, 7, v3")
    e("v_and_b32 v4, 7, v1")
    e("v_xor_b32 v4, v4, v3")
    e(f"s_mov_b32 s30, {lda}")
    e("v_mul_lo_u32 v5, v2, s30")
    e("v_lshlrev_b32 v4, 4, v4")
    e("v_add_u32 v10, v5, v4")
    e("v_lshrrev_b32 v3, 4, v1"); e("v_and_b32 v3, 1, v3"); e("v_lshlrev_b32 v3, 2, v3")
    e("v_and_b32 v4, 7, v1"); e("v_xor_b32 v4, v4, v3")
    e(f"s_mov_b32 s30, {ldw}")
    e("v_mul_lo_u32 v5, v2, s30")
    e("v_lshlrev_b32 v4, 4, v4")
    e("v_add_u32 v11, v5, v4")
    e("s_lshl_b32 s30, s24, 3"); e("s_add_u32 s30, s30, s25"); e(f"s_mul_i32 s27, s30, {lda}")
    e(f"s_mul_i32 s28, s24, {8*ldw}"); e("s_lshl_b32 s30, s26, 1"); e("s_add_u32 s28, s28, s30")
    e("v_and_b32 v2, 31, v1"); e("v_lshrrev_b32 v3, 5, v1")
    e("v_lshrrev_b32 v4, 1, v2"); e("v_and_b32 v4, 7, v4"); e("v_xor_b32 v4, v4, v3")
    e("v_lshlrev_b32 v4, 4, v4"); e("v_lshlrev_b32 v5, 7, v2"); e("v_add_u32 v12, v5, v4")
    if mode == 'q':
        e("s_lshr_b32 s30, s24, 1"); e("s_lshl_b32 s30, s30, 13")
        e("v_add_u32 v12, s30, v12")
        for ks in (1,2,3):
            e(f"v_xor_b32 v{12+ks}, {32*ks}, v12")
    else:
        e("s_lshl_b32 s30, s24, 5")
        e("v_xor_b32 v12, s30, v12")
    e("v_and_b32 v2, 15, v1"); e("v_lshrrev_b32 v3, 2, v2")
    e("v_lshrrev_b32 v4, 5, v1"); e("v_lshlrev_b32 v4, 3, v4"); e("v_add_u32 v4, v4, v3")
    e("v_lshlrev_b32 v16, 7, v4")
    e("v_lshrrev_b32 v4, 1, v3"); e("v_lshlrev_b32 v4, 6, v4"); e("v_add_u32 v16, v16, v4")
    e("v_lshrrev_b32 v4, 4, v1"); e("v_and_b32 v4, 1, v4"); e("v_lshlrev_b32 v4, 5, v4"); e("v_add_u32 v16, v16, v4")
    e("v_and_b32 v4, 3, v1"); e("v_lshlrev_b32 v4, 3, v4"); e("v_add_u32 v16, v16, v4")
    if mode == 'q':
        e("s_and_b32 s30, s24, 1"); e(f"s_mul_i32 s30, s30, {WSUB}"); e(f"s_add_u32 s30, s30, {XREG}")
    else:
        e("s_lshl_b32 s30, s24, 11"); e(f"s_add_u32 s30, s30, {XREG}")
    e("v_add_u32 v16, s30, v16")
    e("v_xor_b32 v17, 64, v16")
    e("v_and_b32 v2, 31, v1"); e(f"s_mov_b32 s30, {ldc}"); e("v_mul_lo_u32 v18, v2, s30")
    e("v_lshrrev_b32 v3, 5, v1"); e("v_lshlrev_b32 v3, 4, v3"); e("v_add_u32 v18, v18, v3")
    for r in range(64, 128):
        e(f"v_mov_b32 v{r}, 0")

    def dma_stage(s):
        slot = (s % R) * STAGE
        for j in range(per_x):
            d_off = 1024 * 4 * j
            e(f"s_add_u32 s35, s34, {slot + d_off}")
            e(f"s_mov_b32 m0, s35")
            e(f"s_add_u32 s30, s27, {32*j*lda}")
            e.vmem(f"buffer_load_dwordx4 v10, s[{sA}:{sA+3}], s30 offen lds", ('X', s))
        for j in range(per_w):
            dd = 4*j
            e(f"s_add_u32 s35, s34, {slot + XREG + 1024*dd}")
            e(f"s_mov_b32 m0, s35")
            e(f"s_add_u32 s30, s28, {(32*(j%2))*ldw + 128*(j//2)}")
            e.vmem(f"buffer_load_dwordx4 v11, s[{sW}:{sW+3}], s30 offen lds", ('W', s))
        e("s_add_u32 s27, s27, 128")
        e(f"s_add_u32 s28, s28, {64*ldw}")

    def reads(s, ki, b):
        slot = (s % R) * STAGE
        ks = ks_list[ki]
        hi = slot >= 65536
        assert not hi or mode == 'q' or True
        for tb in range(2):
            off = slot + 4096*tb
            xa = 12 + (ks if mode == 'q' else 0)
            if off >= 65536:
                e(f"v_add_u32 v52, 0x10000, v{xa}"); e(f"ds_read_b128 v[{fx(b,tb)}:{fx(b,tb)+3}], v52 offset:{off-65536}")
            else:
                e(f"ds_read_b128 v[{fx(b,tb)}:{fx(b,tb)+3}], v{xa} offset:{off}")
        for nb in range(2):
            for jj in range(2):
                off = slot + (2048*ks if mode == 'q' else 0) + 512*jj
                r = fw(b, nb) + 2*jj
                if off >= 65536:
                    e(f"v_add_u32 v53, 0x10000, v{16+nb}"); e(f"ds_read_b64_tr_b16 v[{r}:{r+1}], v53 offset:{off-65536}")
                else:
                    e(f"ds_read_b64_tr_b16 v[{r}:{r+1}], v{16+nb} offset:{off}")
        return 6

    def mfmas(b):
        for nb in range(2):
            for tb in range(2):
                a = acc(nb, tb)
                e(f"v_mfma_f32_32x32x16_bf16 v[{a}:{a+15}], v[{fw(b,nb)}:{fw(b,nb)+3}], v[{fx(b,tb)}:{fx(b,tb)+3}], v[{a}:{a+15}]")

    nk = len(ks_list)
    e("s_lshl_b32 s34, s24, 10")
    for s in range(R-1):
        dma_stage(s)
    e.wait_vm(lambda t: t[1] <= 0)
    e("s_barrier")
    step = 0
    reads(0, 0, step % 2)

    def stage_code(s, do_dma, last):
        nonlocal step
        for ki in range(nk):
            cur = step % 2
            if ki == nk-1:
                if not last:
                    e.wait_vm(lambda t: t[1] <= s+1)
                    e("s_barrier")
                    if do_dma: dma_stage(s+R-1)
                    n = reads(s+1, 0, 1-cur)
                    e(f"s_waitcnt lgkmcnt({n})")
                else:
                    e("s_waitcnt lgkmcnt(0)")
            else:
                n = reads(s, ki+1, 1-cur)
                e(f"s_waitcnt lgkmcnt({n})")
            mfmas(cur)
            step += 1

    n_it = (nst - R + 1) // R
    e(f"s_mov_b32 s29, {n_it}")
    e.label(f"L_{name}_loop")
    q0 = list(e.vm)
    assert (R*nk) % 2 == 0
    for s in range(R):
        stage_code(s, True, False)
    shifted = [(t[0], t[1]-R) for t in e.vm]
    assert shifted == q0, (shifted, q0)
    e("s_sub_u32 s29, s29, 1")
    e("s_cmp_lg_u32 s29, 0")
    e(f"s_cbranch_scc1 L_{name}_loop")
    e.vm = [(t[0], t[1] + (n_it-1)*R) for t in e.vm]
    for s in range(n_it*R, nst):
        stage_code(s, s + R - 1 <= nst - 1, s == nst-1)

    e("s_nop 15"); e("s_nop 3")
    if mode == 'o':
        e("s_barrier")
        e("v_lshlrev_b32 v2, 4, v1")
        e("s_mul_i32 s30, s24, 16384")
        e("v_add_u32 v2, s30, v2")
        for blk in range(4):
            a = acc(blk >> 1, blk & 1)
            for q in range(4):
                e(f"ds_write_b128 v2, v[{a+4*q}:{a+4*q+3}] offset:{blk*4096 + q*1024}")
        e("s_waitcnt lgkmcnt(0)")
        e("s_barrier")
        e("v_lshlrev_b32 v2, 4, v1")
        e("s_lshl_b32 s30, s24, 12")
        e("v_add_u32 v2, s30, v2")
        for w in range(4):
            for q in range(4):
                e(f"ds_read_b128 v[{20+16*w+4*q}:{20+16*w+4*q+3}], v2 offset:{w*16384 + q*1024}")
        e("s_waitcnt lgkmcnt(0)")
        for r in range(16):
            e(f"v_add_f32 v{84+r}, v{20+r}, v{36+r}")
            e(f"v_add_f32 v{100+r}, v{52+r}, v{68+r}")
        for r in range(16):
            e(f"v_add_f32 v{84+r}, v{84+r}, v{100+r}")
        blocks = [(84, None)]
    else:
        blocks = [(acc(nb,tb), (nb,tb)) for nb in range(2) for tb in range(2)]

    for (a, nbtb) in blocks:
        if mode == 'q':
            nb, tb = nbtb
            e("s_lshr_b32 s30, s24, 1"); e("s_lshl_b32 s30, s30, 6"); e(f"s_add_u32 s30, s30, {32*tb}"); e("s_add_u32 s30, s30, s25")
            e(f"s_mul_i32 s30, s30, {ldc}")
            e("s_and_b32 s31, s24, 1"); e("s_lshl_b32 s31, s31, 6"); e(f"s_add_u32 s31, s31, {32*nb}"); e("s_add_u32 s31, s31, s26")
        else:
            e("s_and_b32 s30, s24, 1"); e("s_lshl_b32 s30, s30, 5"); e("s_add_u32 s30, s30, s25"); e(f"s_mul_i32 s30, s30, {ldc}")
            e("s_lshr_b32 s31, s24, 1"); e("s_lshl_b32 s31, s31, 5"); e("s_add_u32 s31, s31, s26")
        e("s_lshl_b32 s31, s31, 1"); e("s_add_u32 s30, s30, s31")
        for t in range(2):
            for rq in (2*t, 2*t+1):
                for i in range(2):
                    e(f"v_cvt_pk_bf16_f32 v{52 + 2*(rq-2*t) + i}, v{a+4*rq+2*i}, v{a+4*rq+2*i+1}")
            e("s_nop 1")
            e("v_permlane32_swap_b32 v52, v54")
            e("v_permlane32_swap_b32 v53, v55")
            e("s_nop 0")
            e(f"buffer_store_dwordx4 v[52:55], v18, s[{sC}:{sC+3}], s30 offen offset:{32*t}")
            e("s_nop 1")
    e.label(f"L_{name}_end")
    e("s_endpgm")
    return e.text(), kd(name, 128)
```

```python
import sys
from asmlib import *
from gemm import gen_gemm
from attn import gen_attn

HDR = open('standalone__gqa_block_cached__sampling.s.ref').read().split('; Override launch')[0]

def main(out):
    WS = 56
    k1, d1 = gen_gemm("gqa_qproj_kernel", 'q', 0, 0, 2048, 2 << 20, 24, 8192, 8 << 20, WS, 0, 8192, 8 << 20, 1024)
    k2, d2 = gen_attn("gqa_attn_kernel")
    k3, d3 = gen_gemm("gqa_oproj_kernel", 'o', WS, 8 << 20, 8192, 8 << 20, 32, 2048, 8 << 20, 40, 0, 2048, 2 << 20, 4096)
    s = HDR
    s += "; Three launches: q = x@wq (-> d_ws[0:8MiB]), GQA attention (-> d_ws[8:16MiB]), out = o@wo.\n"
    s += "; @launch kernel=gqa_qproj_kernel grid=(256,1,1) block=(256,1,1) lds=131072\n"
    s += "; @launch kernel=gqa_attn_kernel grid=(256,1,1) block=(512,1,1) lds=131072\n"
    s += "; @launch kernel=gqa_oproj_kernel grid=(256,1,1) block=(256,1,1) lds=131072\n"
    s += '.amdgcn_target "amdgcn-amd-amdhsa--gfx950"\n.text\n'
    s += k1 + k2 + k3
    s += '.section .rodata,"a"\n.p2align 6\n' + d1 + d2 + d3
    open(out, 'w').write(s)

if __name__ == "__main__":
    main(sys.argv[1] if len(sys.argv) > 1 else 'standalone__gqa_block_cached__sampling.s')
```
